```python
import torch

def _softmax(x, axis=-1):
    return torch.softmax(x, dim=axis)
def _gelu(x):
    return torch.nn.functional.gelu(x, approximate="tanh")
def _silu(x):
    return torch.nn.functional.silu(x)
def _sigmoid(x):
    return torch.sigmoid(x)
def _layernorm(x, axis=-1, eps=1e-5):
    m = x.mean(dim=axis, keepdim=True)
    v = x.var(dim=axis, keepdim=True, unbiased=False)
    return (x - m) / torch.sqrt(v + eps)
def _scatter_add(tgt, idx, src, axis=0):
    return tgt.clone().index_add_(axis, idx, src)
def _segment_sum(src, seg, n):
    out = torch.zeros((n,) + src.shape[1:], dtype=src.dtype)
    return out.index_add_(0, seg, src)
def _pad(x, pw):
    flat = tuple(v for pair in reversed(pw) for v in pair)
    return torch.nn.functional.pad(x, flat)

kernel_name = 'concat_heads__gqa_block_cached__gqa_block_cached__near_ridge'

def setup_inputs():

    _w = (lambda a: (lambda t: t.to(torch.bfloat16) if t.is_floating_point() else t)(torch.as_tensor(a)))
    def _A_setup():
        B, Sq, D = 8, 64, 576
        Hq, Hkv, Sk, Dh = 32, 16, 512, 128
        assert Hq % Hkv == 0, (Hq, Hkv)
        return {
            "x": _w((lambda *s: torch.randn(*s, dtype=torch.bfloat16) * 0.8)(B, Sq, D)),
            "k_cache": _w((lambda *s: torch.randn(*s, dtype=torch.bfloat16) * 0.8)(B, Hkv, Sk, Dh)),
            "v_cache": _w((lambda *s: torch.randn(*s, dtype=torch.bfloat16) * 0.05)(B, Hkv, Sk, Dh)),
            "wq": _w((lambda *s: torch.randn(*s, dtype=torch.bfloat16) * 0.8)(D, Hq * Dh) * (D ** -0.5)),
            "wo": _w((lambda *s: torch.randn(*s, dtype=torch.bfloat16) * 0.05)(Hq * Dh, D) * ((Hq * Dh) ** -0.5)),
        }
    _A_in = _A_setup()

    def _B_setup():
        B, Sq, D = 8, 64, 576
        Hq, Hkv, Sk, Dh = 32, 16, 512, 128
        assert Hq % Hkv == 0, (Hq, Hkv)
        return {
            "x": _w((lambda *s: torch.randn(*s, dtype=torch.bfloat16) * 0.8)(B, Sq, D)),
            "k_cache": _w((lambda *s: torch.randn(*s, dtype=torch.bfloat16) * 0.8)(B, Hkv, Sk, Dh)),
            "v_cache": _w((lambda *s: torch.randn(*s, dtype=torch.bfloat16) * 0.05)(B, Hkv, Sk, Dh)),
            "wq": _w((lambda *s: torch.randn(*s, dtype=torch.bfloat16) * 0.8)(D, Hq * Dh) * (D ** -0.5)),
            "wo": _w((lambda *s: torch.randn(*s, dtype=torch.bfloat16) * 0.05)(Hq * Dh, D) * ((Hq * Dh) ** -0.5)),
        }
    _B_in = _B_setup()

    return {
        "A_x": _A_in["x"],
        "A_k_cache": _A_in["k_cache"],
        "A_v_cache": _A_in["v_cache"],
        "A_wq": _A_in["wq"],
        "A_wo": _A_in["wo"],
        "B_x": _B_in["x"],
        "B_k_cache": _B_in["k_cache"],
        "B_v_cache": _B_in["v_cache"],
        "B_wq": _B_in["wq"],
        "B_wo": _B_in["wo"],
    }

def reference(A_x, A_k_cache, A_v_cache, A_wq, A_wo, B_x, B_k_cache, B_v_cache, B_wq, B_wo):
    def _A_ref(x, k_cache, v_cache, wq, wo):
        B, Sq, D = x.shape
        Hq, Dh = 32, 128
        Hkv = k_cache.shape[1]
        rep = Hq // Hkv
        q = (lambda x, *d: x.permute(*d))((x @ wq).reshape(B, Sq, Hq, Dh), 0, 2, 1, 3)
        k = (lambda x, n, axis: torch.repeat_interleave(x, n, dim=axis))(k_cache, rep, axis=1)
        v = (lambda x, n, axis: torch.repeat_interleave(x, n, dim=axis))(v_cache, rep, axis=1)
        scores = torch.einsum("bhqd,bhkd->bhqk", q, k) * (Dh ** -0.5)
        p = _softmax(scores, axis=-1)
        o = torch.einsum("bhqk,bhkd->bhqd", p, v)
        return (lambda x, *d: x.permute(*d))(o, 0, 2, 1, 3).reshape(B, Sq, Hq * Dh) @ wo

    def _B_ref(x, k_cache, v_cache, wq, wo):
        B, Sq, D = x.shape
        Hq, Dh = 32, 128
        Hkv = k_cache.shape[1]
        rep = Hq // Hkv
        q = (lambda x, *d: x.permute(*d))((x @ wq).reshape(B, Sq, Hq, Dh), 0, 2, 1, 3)
        k = (lambda x, n, axis: torch.repeat_interleave(x, n, dim=axis))(k_cache, rep, axis=1)
        v = (lambda x, n, axis: torch.repeat_interleave(x, n, dim=axis))(v_cache, rep, axis=1)
        scores = torch.einsum("bhqd,bhkd->bhqk", q, k) * (Dh ** -0.5)
        p = _softmax(scores, axis=-1)
        o = torch.einsum("bhqk,bhkd->bhqd", p, v)
        return (lambda x, *d: x.permute(*d))(o, 0, 2, 1, 3).reshape(B, Sq, Hq * Dh) @ wo

    a = _A_ref(A_x, A_k_cache, A_v_cache, A_wq, A_wo)
    b = _B_ref(B_x, B_k_cache, B_v_cache, B_wq, B_wo)
    return torch.concatenate([a, b], axis=-1)
```

```python
import re, sys
TRANS = ("v_exp_f32","v_log_f32","v_rcp_f32","v_rsq_f32","v_sqrt_f32","v_sin_f32","v_cos_f32")
def regs(tok):
    tok = tok.strip()
    tok = tok.lstrip("-").strip("|")
    m = re.fullmatch(r"([vsa])(\d+)", tok)
    if m: return {(m.group(1), int(m.group(2)))}
    m = re.fullmatch(r"([vsa])\[(\d+):(\d+)\]", tok)
    if m: return {(m.group(1), i) for i in range(int(m.group(2)), int(m.group(3)) + 1)}
    if tok == "vcc": return {("s", "vcc")}
    if tok in ("vcc_lo", "vcc_hi"): return {("s", "vcc")}
    if tok == "exec": return {("s", "exec")}
    if tok == "m0": return {("s", "m0")}
    return set()
class I:
    def __init__(s, line, n):
        s.line = line; s.n = n
        p = line.split(None, 1); s.op = p[0]
        rest = p[1] if len(p) > 1 else ""
        ops = [o.strip() for o in rest.split(",")] if rest else []
        if ops:
            last = ops[-1].split()
            s.mods = last[1:]; ops[-1] = last[0] if last else ""
        else: s.mods = []
        s.ops = ops
        s.mfma = s.op.startswith("v_mfma"); s.valu = s.op.startswith("v_") and not s.mfma
        s.salu = s.op.startswith("s_"); s.ds = s.op.startswith("ds_"); s.vmem = s.op.startswith(("buffer_", "global_"))
        s.dst = set(); s.src = set(); s.A = s.B = s.C = set()
        R = [regs(o) for o in ops]
        if s.mfma:
            s.dst = R[0]; s.A, s.B, s.C = R[1], R[2], R[3]; s.src = s.A | s.B | s.C
            s.passes = 8 if "32x32x16" in s.op else 4
        elif s.valu:
            if s.op.startswith("v_permlane") and "swap" in s.op:
                s.dst = R[0] | R[1]; s.src = R[0] | R[1]
            else:
                s.dst = R[0]; s.src = set().union(*R[1:]) if len(R) > 1 else set()
                if s.op.startswith(("v_fmac", "v_dot2c", "v_pk_fmac", "v_writelane")): s.src |= R[0]
                if s.op.startswith("v_cndmask") and len(R) == 3: s.src |= {("s", "vcc")}
                if s.op.startswith(("v_add_co", "v_sub_co", "v_addc_co")): s.dst |= R[1]
        elif s.ds:
            if s.op.startswith("ds_read") or s.op.startswith("ds_bpermute") or "rtn" in s.op: s.dst = R[0]; s.src = set().union(*R[1:])
            else: s.src = set().union(*R)
        elif s.vmem:
            s.lds = "lds" in s.mods
            if "load" in s.op and not s.lds: s.dst = R[0]; s.src = set().union(*R[1:])
            else: s.src = set().union(*R)
            if "store" in s.op: s.data = R[0] if s.op.startswith("buffer") else R[1]
        elif s.salu:
            if s.op.startswith(("s_cmp", "s_cbranch", "s_branch", "s_waitcnt", "s_nop", "s_barrier", "s_endpgm", "s_setprio", "s_sleep")): s.src = set().union(*R) if R else set()
            else: s.dst = R[0] if R else set(); s.src = set().union(*R[1:]) if len(R) > 1 else set()
        s.states = int(ops[0]) + 1 if s.op == "s_nop" else 1
def need(p, c):
    n = 0; why = ""
    def up(k, w):
        nonlocal n, why
        if k > n: n, why = k, w
    vd = {r for r in p.dst if r[0] in "va"}; sd = {r for r in p.dst if r[0] == "s"}
    if p.valu:
        if c.mfma and vd & c.src: up(2, "VALU->MFMA")
        if p.op.startswith(TRANS) and c.valu and not c.op.startswith(TRANS) and vd & c.src: up(1, "trans->VALU")
        if c.op.startswith("v_permlane") and vd & c.src: up(2, "VALU->permlane")
        if c.op.startswith(("v_readfirstlane", "v_readlane")) and vd & c.src: up(1, "VALU->readlane")
        if c.valu and ("dpp" in c.line or "row_" in c.line or "quad_perm" in c.line) and vd & c.src: up(2, "VALU->DPP")
        if c.valu and sd & c.src: up(2, "VALU sgpr->VALU")
        if c.vmem and sd & c.src: up(5, "VALU sgpr->VMEM")
        if ("op_sel" in p.line or "sdwa" in p.line) and c.valu and vd & (c.src | c.dst) and not p.op.startswith("v_pk"): up(1, "opsel")
        if p.op.startswith("v_dot") and (c.valu or c.mfma or c.vmem or c.ds) and vd & (c.src | c.dst):
            if not (c.op == p.op and not (vd & (regs(c.ops[1]) | regs(c.ops[2])))): up(3, "dot")
    if p.mfma:
        big = {8: (10, 12, 7), 4: (6, 8, 3)}[p.passes]
        if c.mfma:
            if p.dst & c.C and not (p.dst == c.C and p.passes == c.passes): up(big[0], "MFMA D->C partial")
            if p.dst & (c.A | c.B): up(big[1], "MFMA D->AB")
            if p.dst & c.dst and not (p.dst == c.C): up(big[0], "MFMA WAW?")
        if c.valu and p.dst & (c.src | c.dst): up(big[1], "MFMA D->VALU")
        if (c.ds or c.vmem) and p.dst & (c.src | c.dst): up(big[1], "MFMA D->mem")
        if c.valu and p.C & c.dst: up(big[2], "MFMA C WAR")
    if p.salu and ("s", "m0") in p.dst and c.vmem and getattr(c, "lds", False): up(1, "M0->DMA")
    if p.vmem and "store" in p.op and ("x4" in p.op or "x3" in p.op) and p.data & c.dst:
        up(2 if c.valu else 1, "store data WAR")
    return n, why
def check(text, verbose=True):
    ins = []; labels = {}
    for ln, raw in enumerate(text.split("\n"), 1):
        l = raw.split(";")[0].strip()
        if not l or l.startswith("."): continue
        if l.endswith(":"): labels[l[:-1]] = len(ins); continue
        if l.startswith(("amdhsa", "-", "name")): continue
        ins.append(I(l, ln))
    def succ(i):
        x = ins[i]
        if x.op == "s_endpgm": return []
        if x.op == "s_branch": return [labels[x.ops[0]]]
        r = [i + 1] if i + 1 < len(ins) else []
        if x.op.startswith("s_cbranch"): r.append(labels[x.ops[0]])
        return r
    bad = 0
    for i, p in enumerate(ins):
        if not (p.valu or p.mfma or p.vmem or (p.salu and ("s", "m0") in p.dst)): continue
        seen = {}
        st = [(j, 0) for j in succ(i)]
        while st:
            j, d = st.pop()
            if d > 12 or seen.get(j, 99) <= d: continue
            seen[j] = d
            n, why = need(p, ins[j])
            if n > d:
                bad += 1
                if verbose: print(f"HAZ {why}: need {n} have {d}\n   L{p.n}: {p.line}\n   L{ins[j].n}: {ins[j].line}")
            for k in succ(j): st.append((k, d + ins[j].states))
    return bad
if __name__ == "__main__":
    b = check(open(sys.argv[1]).read())
    print("hazards:", b)
```

```python
import sys
sys.path.insert(0,'exp')
import importlib, haz
def sch(s):
    r = {}
    for p in s.split("|"):
        k, v = p.split(":"); k = k.strip()
        r[k if k in "AX" else int(k)] = v.split()
    return r
def mk(g, name, **kw):
    G = importlib.import_module(g)
    t = G.gen(**kw); open(f"var/{name}.s", "w").write(t); print(name, haz.check(t), len(t))
if __name__ == "__main__":
    mk("gen3", "y1")
    mk("gen3", "y2", bsched=sch("A:V3 K4 V4|0:K5|1:V5 K6|2:V6 K7|3:V7|4:R3|5:W0 R4|6:W1 R5|7:W2"), osched=sch("X:R6|1:R7|2:R8"))
    mk("gen3", "y3", bsched=sch("A:V3 K4 V4|0:K5|1:V5 K6|2:V6 K7|3:V7|4:R7 R8|5:W0|6:W1|7:W2"), osched=sch("X:W3 W4|2:W5|3:W6"))
```

```python
import sys; sys.path.insert(0,'exp')
import importlib, os, haz
G = importlib.import_module(os.environ.get("GEN", "gen5"))
from mk import sch
src=open('common.py').read()
exec(src[src.index("KVS ="):src.index("def tail")]); exec(src[src.index("def mkv"):src.index("def mx")])
exec(src[src.index("KV4 ="):src.index("np.set_printoptions(precision=2, suppress=True, linewidth=200)", src.index("KV4 ="))])
exec(src[src.index("def Z(kv"):src.index("def cyl")])
exec(src[src.index("B = lambda kv=E5"):])
s=open(sys.argv[1]).read(); s = s[s.index("\n", s.index("ref32(d)") if "ref32(d)" in s else 0):].split("if __name__")[0].split("\nmx(V")[0]
exec(s)
for k in V:
    t = G.gen(**V[k]); print(k, len(t), "haz", haz.check(t)); open(f"var/{k}.s", "w").write(t)
    t = G.gen(**dict(V[k], stamps=True))
```
